```python
import torch

def _softmax(x, axis=-1):
    return torch.softmax(x, dim=axis)
def _gelu(x):
    return torch.nn.functional.gelu(x, approximate="tanh")
def _silu(x):
    return torch.nn.functional.silu(x)
def _sigmoid(x):
    return torch.sigmoid(x)
def _layernorm(x, axis=-1, eps=1e-5):
    m = x.mean(dim=axis, keepdim=True)
    v = x.var(dim=axis, keepdim=True, unbiased=False)
    return (x - m) / torch.sqrt(v + eps)
def _scatter_add(tgt, idx, src, axis=0):
    return tgt.clone().index_add_(axis, idx, src)
def _segment_sum(src, seg, n):
    out = torch.zeros((n,) + src.shape[1:], dtype=src.dtype)
    return out.index_add_(0, seg, src)
def _pad(x, pw):
    flat = tuple(v for pair in reversed(pw) for v in pair)
    return torch.nn.functional.pad(x, flat)

kernel_name = 'interleave_layers__sliding_local_dilated__swiglu_ffn__prompt'

def setup_inputs():

    _w = (lambda a: (lambda t: t.to(torch.bfloat16) if t.is_floating_point() else t)(torch.as_tensor(a)))
    def _A_setup():
        B, S, D = 1, 2048, 512
        return {
            "x": _w((lambda *s: torch.randn(*s, dtype=torch.bfloat16) * 0.05)(B, S, D)),
            "wqkv": _w((lambda *s: torch.randn(*s, dtype=torch.bfloat16) * 0.05)(D, 3 * D)),
            "wo": _w((lambda *s: torch.randn(*s, dtype=torch.bfloat16) * 0.05)(D, D)),
        }
    _A_in = _A_setup()

    def _B_setup():
        B, S, D, F = 1, 2048, 512, 1792
        return {
            "x": _w((lambda *s: torch.randn(*s, dtype=torch.bfloat16) * 0.05)(B, S, D)),
            "w_gate": _w((lambda *s: torch.randn(*s, dtype=torch.bfloat16) * 0.05)(D, F)),
            "w_up": _w((lambda *s: torch.randn(*s, dtype=torch.bfloat16) * 0.05)(D, F)),
            "w_down": _w((lambda *s: torch.randn(*s, dtype=torch.bfloat16) * 0.05)(F, D)),
        }
    _B_in = _B_setup()

    return {
        "A_x": _A_in["x"],
        "A_wqkv": _A_in["wqkv"],
        "A_wo": _A_in["wo"],
        "B_x": _B_in["x"],
        "B_w_gate": _B_in["w_gate"],
        "B_w_up": _B_in["w_up"],
        "B_w_down": _B_in["w_down"],
    }

def reference(A_x, A_wqkv, A_wo, B_x, B_w_gate, B_w_up, B_w_down):
    def _A_ref(x, wqkv, wo):
        B, S, D = x.shape
        H = 32; Dh = D // H
        W, dil = 8, 2
        qkv = (lambda x, *d: x.permute(*d))((x @ wqkv).reshape(B, S, 3, H, Dh), 2, 0, 3, 1, 4)
        q, k, v = qkv[0], qkv[1], qkv[2]
        scale = Dh ** -0.5
        pos = torch.arange(S)
        off = torch.arange(W) * dil
        idx = pos[:, None] - off[None, :]
        mask = idx >= 0
        idx_c = torch.where(mask, idx, 0).reshape(-1)
        kg = k[:, :, idx_c, :].reshape(B, H, S, W, Dh)
        vg = v[:, :, idx_c, :].reshape(B, H, S, W, Dh)
        logits = torch.einsum("bhsd,bhswd->bhsw", q, kg) * scale
        logits = torch.where(mask[None, None, :, :], logits, -1e9)
        attn = _softmax(logits, axis=-1)
        o = torch.einsum("bhsw,bhswd->bhsd", attn, vg)
        return (lambda x, *d: x.permute(*d))(o, 0, 2, 1, 3).reshape(B, S, D) @ wo

    def _B_ref(x, w_gate, w_up, w_down):
        g = _silu(x @ w_gate)
        u = x @ w_up
        return (g * u) @ w_down

    x = A_x
    x = x + _A_ref(_layernorm(x, axis=-1), A_wqkv, A_wo)
    x = x + _B_ref(_layernorm(x, axis=-1), B_w_gate, B_w_up, B_w_down)
    x = x + _A_ref(_layernorm(x, axis=-1), A_wqkv, A_wo)
    x = x + _B_ref(_layernorm(x, axis=-1), B_w_gate, B_w_up, B_w_down)
    return x
```

```python
import re

TRANS = ("v_exp_f32", "v_log_f32", "v_rcp_f32", "v_rsq_f32", "v_sqrt_f32", "v_sin_f32", "v_cos_f32")
_REG = re.compile(r"^(-|abs\(|\|)?([vas])(\d+)\)?\|?$")
_RNG = re.compile(r"^(-)?([vas])\[(\d+):(\d+)\]$")


def regs_of(tok):
    tok = tok.strip()
    m = _RNG.match(tok)
    if m:
        return [(m.group(2), i) for i in range(int(m.group(3)), int(m.group(4)) + 1)]
    m = _REG.match(tok)
    if m:
        return [(m.group(2), int(m.group(3)))]
    if tok in ("vcc", "vcc_lo", "vcc_hi"):
        return [("x", "vcc")]
    if tok in ("exec", "exec_lo", "exec_hi"):
        return [("x", "exec")]
    if tok == "m0":
        return [("x", "m0")]
    return []


class Ins:
    __slots__ = ("text", "op", "rd", "wr", "kind", "tag", "cond", "passes", "srcC", "wait_tags",
                 "need_vm", "need_lg", "nops", "wide", "raw", "wait_regs")

    def __init__(self, text, tag=None, cond=False):
        self.text = text
        self.tag = tag
        self.cond = cond
        self.passes = 0
        self.srcC = []
        self.wait_tags = None
        self.wait_regs = None
        self.need_vm = None
        self.need_lg = None
        self.nops = 0
        self.wide = False
        self.raw = False
        self.rd, self.wr = [], []
        t = text.split(";")[0].strip()
        if not t or t.endswith(":") or t.startswith("."):
            self.op = ""
            self.kind = "label" if t.endswith(":") else "none"
            return
        parts = t.split(None, 1)
        op = parts[0]
        self.op = op
        rest = parts[1] if len(parts) > 1 else ""
        ops = [x.strip() for x in rest.split(",")] if rest else []
        mods = []
        if ops:
            last = ops[-1].split()
            ops[-1] = last[0] if last else ""
            mods = last[1:]
        R = [regs_of(o) for o in ops]
        flat = lambda L: [r for x in L for r in x]
        if op.startswith("v_mfma"):
            self.kind = "mfma"
            self.passes = 8 if "32x32" in op else 4
            self.wr = R[0]
            self.rd = flat(R[1:])
            self.srcC = R[3]
        elif op.startswith("buffer_load") or op.startswith("global_load"):
            if "lds" in mods or "_lds_" in op:
                self.kind = "dma"
                self.rd = flat(R) + [("x", "m0")]
            else:
                self.kind = "vload"
                self.wr = R[0]
                self.rd = flat(R[1:])
        elif op.startswith("buffer_store") or op.startswith("global_store") or op.startswith("buffer_atomic"):
            self.kind = "vstore"
            self.rd = flat(R)
            self.wide = op.endswith("x4") or op.endswith("x3")
            if op.startswith("buffer_store"):
                self.srcC = R[0]
        elif op.startswith("ds_read") or op.startswith("ds_bpermute") or op.startswith("ds_swizzle"):
            self.kind = "dsread"
            self.wr = R[0]
            self.rd = flat(R[1:])
        elif op.startswith("ds_write"):
            self.kind = "dswrite"
            self.rd = flat(R)
        elif op.startswith("s_load") or op.startswith("s_buffer_load") or op in ("s_memtime", "s_memrealtime"):
            self.kind = "smem"
            self.wr = R[0]
            self.rd = flat(R[1:])
        elif op == "s_waitcnt":
            self.kind = "wait"
        elif op == "s_nop":
            self.kind = "nop"
        elif op == "s_barrier":
            self.kind = "barrier"
        elif op.startswith("s_cbranch") or op in ("s_branch", "s_endpgm", "s_setpc_b64"):
            self.kind = "branch"
            if "vcc" in op:
                self.rd = [("x", "vcc")]
            if "scc" in op:
                self.rd = [("x", "scc")]
            if "exec" in op:
                self.rd = [("x", "exec")]
            if op == "s_setpc_b64":
                self.rd = R[0]
        elif op.startswith("s_cmp") or op.startswith("s_bitcmp"):
            self.kind = "salu"
            self.rd = flat(R)
            self.wr = [("x", "scc")]
        elif op in ("s_sleep", "s_setprio"):
            self.kind = "salu"
        elif op.startswith("s_"):
            self.kind = "salu"
            self.wr = R[0] + [("x", "scc")]
            if op.startswith("s_mov") or op.startswith("s_cselect") or op.startswith("s_getreg") or op.startswith("s_getpc") or op.startswith("s_mul"):
                self.wr = R[0]
            self.rd = flat(R[1:])
            if op.startswith("s_cselect") or op.startswith("s_addc") or op.startswith("s_subb"):
                self.rd.append(("x", "scc"))
        elif op.startswith("v_"):
            self.kind = "trans" if op.replace("_e32", "").replace("_e64", "") in TRANS else "valu"
            if op.startswith("v_permlane"):
                self.wr = R[0] + R[1]
                self.rd = R[0] + R[1]
            else:
                self.wr = R[0]
                self.rd = flat(R[1:])
                if op.startswith("v_fmac") or op.startswith("v_dot2c") or op.startswith("v_writelane"):
                    self.rd = self.rd + R[0]
                if op.startswith("v_add_co") or op.startswith("v_addc_co"):
                    self.wr = R[0] + R[1]
                    self.rd = flat(R[2:])
        else:
            raise ValueError("unknown instruction: " + text)


class Prog:
    def __init__(self):
        self.L = []
        self.cond = False

    def e(self, text, tag=None):
        last = None
        for line in text.split("\n"):
            line = line.strip()
            if not line:
                continue
            last = Ins(line, tag, self.cond)
            self.L.append(last)
        return last

    def add(self, ins):
        if isinstance(ins, (list, tuple)):
            for i in ins:
                self.add(i)
        elif isinstance(ins, str):
            self.e(ins)
        else:
            if self.cond:
                ins.cond = True
            self.L.append(ins)

    def wait(self, tags=(), regs=()):
        self.add(W(tags, regs))


def I(text, tag=None):
    return Ins(text, tag)


def W(tags=(), regs=()):
    w = Ins("s_waitcnt")
    w.kind = "pwait"
    w.wait_tags = set([tags] if isinstance(tags, str) else tags)
    rr = []
    for r in ([regs] if isinstance(regs, str) else regs):
        rr += regs_of(r)
    w.wait_regs = set(rr)
    return w


VM = ("vload", "vstore", "dma")
LG = ("dsread", "dswrite")


def sim_waits(seq):
    vm, lg = [], []
    smem = []

    def need(lst, pred):
        idx = -1
        for k, o in enumerate(lst):
            if pred(o):
                idx = k
        if idx < 0:
            return None
        n = sum(1 for o in lst[idx + 1:] if not o.cond)
        return idx, n

    for ins in seq:
        if ins.kind in ("label", "none"):
            continue
        if ins.kind == "wait":
            m = re.search(r"vmcnt\((\d+)\)", ins.text)
            if m and not ins.cond:
                n = int(m.group(1))
                vm = vm[len(vm) - n:] if n < len(vm) else vm
                if n == 0:
                    vm = []
            m = re.search(r"lgkmcnt\((\d+)\)", ins.text)
            if m and not ins.cond:
                n = int(m.group(1))
                if n == 0:
                    lg, smem = [], []
                elif not smem:
                    lg = lg[len(lg) - n:] if n < len(lg) else lg
            continue
        touched = set(ins.rd) | set(ins.wr)
        if ins.kind == "pwait":
            touched = ins.wait_regs
            pv = lambda o: (o.tag in ins.wait_tags) or bool(touched & set(o.wr))
        else:
            pv = lambda o: bool(touched & set(o.wr))
        r = need(vm, pv)
        if r is not None:
            idx, n = r
            assert n <= 63, "vmcnt overflow at " + ins.text
            ins.need_vm = n if ins.need_vm is None else min(ins.need_vm, n)
            if not ins.cond:
                vm = vm[idx + 1:]
        r = need(lg, pv)
        if r is not None:
            idx, n = r
            n = min(n, 15)
            ins.need_lg = n if ins.need_lg is None else min(ins.need_lg, n)
            if not ins.cond:
                lg = lg[idx + 1:]
        if any(pv(o) for o in smem):
            ins.need_lg = 0
            if not ins.cond:
                lg, smem = [], []
        if ins.kind in VM:
            vm.append(ins)
            if len([o for o in vm if not o.cond]) > 63:
                vm = vm[1:]
        elif ins.kind in LG:
            lg.append(ins)
        elif ins.kind == "smem":
            smem.append(ins)


def is_valu(i):
    return i.kind in ("valu", "trans")


def hazard_need(p, c):
    need = 0
    pw, cr, cw = set(p.wr), set(c.rd), set(c.wr)
    vec = lambda s: {r for r in s if r[0] in "va"}
    sg = lambda s: {r for r in s if r[0] == "s" or r == ("x", "vcc")}
    if is_valu(p):
        if c.kind == "mfma" and vec(pw) & cr:
            need = max(need, 2)
        if c.op.startswith("v_permlane") and vec(pw) & cr:
            need = max(need, 2)
        if ("dpp" in c.op or "row_" in c.text or "quad_perm" in c.text) and vec(pw) & cr:
            need = max(need, 2)
        if (c.op.startswith("v_readfirstlane") or c.op.startswith("v_readlane")) and vec(pw) & cr:
            need = max(need, 1)
        if p.kind == "trans" and is_valu(c) and vec(pw) & cr:
            need = max(need, 1)
        if sg(pw) & cr:
            if is_valu(c):
                need = max(need, 2)
            if c.kind in VM:
                need = max(need, 5)
            if c.kind in ("salu", "branch", "smem"):
                need = max(need, 1)
        if ("x", "exec") in pw:
            need = max(need, 5)
        if "sdwa" in p.op and is_valu(c) and vec(pw) & (cr | cw):
            need = max(need, 1)
    if p.kind == "mfma":
        big = 12 if p.passes == 8 else 8
        if c.kind == "mfma":
            ab = cr - set(c.srcC)
            cab = set(c.rd[:len(c.rd) - len(c.srcC)])
            if pw & cab:
                need = max(need, big)
            if pw & set(c.srcC):
                same = (list(p.wr) == list(c.srcC)) and p.passes == c.passes
                if not same:
                    need = max(need, 10 if p.passes == 8 else 6)
            elif pw & cw:
                need = max(need, 10 if p.passes == 8 else 6)
        elif c.kind in ("valu", "trans", "vload", "vstore", "dsread", "dswrite", "dma"):
            if pw & (cr | cw):
                need = max(need, big)
        if is_valu(c) and set(p.srcC) & cw:
            need = max(need, 7 if p.passes == 8 else 3)
    if p.kind == "salu" and ("x", "m0") in pw and c.kind == "dma":
        need = max(need, 1)
    if p.kind == "vstore" and p.wide and set(p.srcC) & cw:
        need = max(need, 2 if is_valu(c) else 1)
    return need


def states(i):
    if i.kind in ("label", "none"):
        return 0
    n = i.nops
    if i.kind == "pwait":
        return n + (1 if (i.need_vm is not None or i.need_lg is not None) else 0)
    if i.need_vm is not None or i.need_lg is not None:
        n += 1
    if i.kind == "nop":
        return n + int(i.text.split()[1]) + 1
    return n + 1


def pad_hazards(seq):
    for k, c in enumerate(seq):
        if c.kind in ("label", "none", "pwait", "wait", "nop"):
            continue
        dist = c.nops + (1 if (c.need_vm is not None or c.need_lg is not None) else 0)
        j = k - 1
        worst = 0
        while j >= 0 and dist < 20:
            p = seq[j]
            if p.kind not in ("label", "none", "pwait", "wait", "nop"):
                n = hazard_need(p, c)
                if n > dist:
                    worst = max(worst, n - dist)
            dist += states(p)
            j -= 1
        c.nops += worst


def render(seq):
    out = []
    for i in seq:
        n = i.nops
        while n > 0:
            k = min(n, 16)
            out.append(f"s_nop {k - 1}")
            n -= k
        w = []
        if i.need_vm is not None:
            w.append(f"vmcnt({i.need_vm})")
        if i.need_lg is not None:
            w.append(f"lgkmcnt({i.need_lg})")
        if w:
            out.append("s_waitcnt " + " ".join(w))
        if i.kind != "pwait":
            out.append(i.text)
    return "\n".join(out) + "\n"


def finalize(paths):
    for p in paths:
        sim_waits(p)
    for _ in range(2):
        for p in paths:
            pad_hazards(p)
            pad_hazards([i for i in p if not i.cond])


def cost(i):
    if isinstance(i, (list, tuple)):
        return sum(cost(x) for x in i)
    if i.kind == "trans":
        return 8
    if i.kind == "mfma":
        return 8
    if i.kind in ("label", "none"):
        return 0
    return 4


def sprinkle(gaps, fillers, lo, hi):
    n = hi - lo
    base = [cost(gaps[g]) for g in range(lo, hi)]
    total = sum(base) + cost(fillers)
    k = 0
    cum = 0
    for g in range(n):
        cum += base[g]
        target = total * (g + 1) / n
        while k < len(fillers) and (cum + cost(fillers[k]) / 2 <= target or g == n - 1):
            f = fillers[k]
            if isinstance(f, (list, tuple)):
                gaps[lo + g].extend(f)
            else:
                gaps[lo + g].append(f)
            cum += cost(f)
            k += 1
```

```python
KB = 1024
WQ = 0x000000
WO = 0x180000
WG = 0x200000
WD = 0x580000
CSQ = 0x740000
CSG = 0x748000
FLAGS = 0x770000
FL_G = 4096
FQ, FW, FG, FD, FH, FX = 0, 512, 1024, 1536, 2048, 2176
HX = 0x780000
HS = 0x800000
STAMP = 0x820000
ACT = 0x1000000
LS = 0x1000000
XA = 0x000000
OO = 0x200000
XB = 0x400000
SA = 0x600000
SB = 0x640000
HH = 0x700000
PB_X = 64 * 256
PB_H = 224 * 256
WS_BYTES = 268435456
```

```python
from asmgen import *
from layout import *

LOG2E = 1.4426950408889634
MISC = 9 * 16384
EX = MISC
ST = MISC + 10240
CQL = MISC + 12288
XCH = MISC
CGL = MISC
MAIN_LDS = 163840
LIMIT = 400000

SLOT = {}
for n, s in zip(["QA", "QB", "QC", "QD", "QE", "QF", "O0", "O1", "QH"], range(9)):
    SLOT[n] = s
for new, old in [("O2", "QA"), ("O3", "QB"), ("G0", "QH"), ("G1", "QC"), ("G2", "QD"), ("G3", "QE"), ("G4", "QF"),
                 ("G5", "O0"), ("G6", "O2"), ("G7", "O1"), ("G8", "O3"), ("G9", "G0"), ("G10", "G1"),
                 ("G11", "G2"), ("G12", "G3"), ("G13", "G4"), ("D0", "G5"), ("D1", "G6"), ("D2", "G7"),
                 ("D3", "G8"), ("D4", "G9"), ("D5", "G10"), ("D6", "G11"), ("D7", "G12"), ("D8", "G13"),
                 ("D9", "D0"), ("D10", "D1"), ("D11", "D3"), ("D12", "D2"), ("D13", "D4")]:
    SLOT[new] = SLOT[old]
assert [SLOT[x] for x in ("D5", "D6", "D7", "D8", "D9", "D10", "D11", "D12", "D13")] == \
       [SLOT[x] for x in ("QC", "QD", "QE", "QF", "O0", "QA", "QB", "O1", "QH")]


class Alloc:
    def __init__(self, kind, start):
        self.kind, self.n = kind, start
        self.names = {}

    def __call__(self, name, count=1, align=1):
        self.n = (self.n + align - 1) // align * align
        r = self.n
        self.n += count
        self.names[name] = r
        return r


S = Alloc("s", 12)
for nm in ("LAY EXP G M W CT RH MH KH WQ WO WG WD LW XAR SAR HXR HSR OW OR XBW SBW XBR SBR HW HR XAW SAW HXW HSW "
           "FQW FQR FWW FWR FGW FGR FDW FDR FHW FHR FXR DMA T0 T1 T2 T3 TO GEXP ISH OUT XCC SI").split():
    globals()["s" + nm] = "s%d" % S(nm)
sTM = S("TM", 2, 2)
sSV = S("SV", 2, 2)

V = Alloc("v", 1)
for nm in ("L0 L1 L2 XO HO SO SS K0 K1 K2 S0 S1 S2 HA HB F16 F8 XW XR EW EH ER STW STQ STV P PX PH "
           "CV0 CV1 CSG NM KK VP ZERO FV OUTO STAMP").split():
    globals()["v" + nm] = "v%d" % V(nm)
rWB = V("WB", 32, 4)
rACC = V("ACC", 52, 4)
rRES = V("RES", 8, 4)
rMC = V("MC", 4, 4)
rMP = V("MP", 4, 4)
rMP0 = V("MP0", 4, 4)
rCQ = V("CQ", 16, 4)
rCH = V("CH", 4, 4)
rONE = V("ONE", 4, 4)
rKP = V("KP", 12, 4)
rVP = V("VPK", 12, 4)
rOB = V("OB", 8, 4)
rSQ = V("SQ", 6, 2)
rSV = V("SVV", 16, 4)
rT = V("T", 32, 4)
NV = V.n
assert NV <= 256, NV


def vr(b, n):
    return f"v[{b}:{b+n-1}]" if n > 1 else f"v{b}"


def ar(b, n):
    return f"a[{b}:{b+n-1}]"


def f32(x):
    import struct
    return "0x%08x" % struct.unpack("<I", struct.pack("<f", x))[0]


WS = "s[4:7]"


def lds_at(pattern, addr):
    regs = {"L": (vL0, vL1, vL2), "K": (vK0, vK1, vK2), "S": (vS0, vS1, vS2)}[pattern]
    return regs[addr >> 16], addr & 0xffff


def dsr(dst, pattern, addr):
    v, o = lds_at(pattern, addr)
    return I(f"ds_read_b128 {vr(dst, 4)}, {v} offset:{o}")


def dma_stage(name):
    if name == "QH":
        base, off, fl = sHXR, 0, " sc1"
    else:
        kind = name[0]
        idx = "ABCDEF".index(name[1]) if kind == "Q" else int(name[1:])
        base, off, fl = {"Q": sWQ, "O": sWO, "G": sWG, "D": sWD}[kind], idx * 16384, ""
    items = []
    for i in range(4):
        it = []
        if i == 0:
            it.append(I(f"s_add_u32 m0, {sLW}, {SLOT[name] * 16384}"))
            it.append(I(f"s_add_u32 {sDMA}, {base}, {off}"))
        it.append(I(f"buffer_load_dwordx4 {vL0}, {WS}, {sDMA} offen offset:{i*1024}{fl} lds", tag=name))
        items.append(it)
    return items


class Body:
    def __init__(self, pfx, st, opts):
        self.P = Prog()
        self.pfx, self.st, self.opts = pfx, st, opts
        self.nl = 0
        self.stamps = int(opts.get("stamps", 0))

    def lab(self, nm=None):
        self.nl += 1
        return f"L{self.pfx}_{nm or 'x'}{self.nl}"

    def stamp(self, k):
        if self.stamps:
            e = self.P.e
            e(f"s_memtime s[{sTM}:{sTM+1}]\ns_add_u32 m0, {sLAY}, {2*k}\ns_waitcnt lgkmcnt(0)")
            e(f"v_writelane_b32 {vSTAMP}, s{sTM}, m0")

    def begin_cond(self, test):
        l = self.lab("c")
        self.P.e(test + " " + l)
        self.P.cond = True
        return l

    def end_cond(self, l):
        self.P.cond = False
        self.P.e(l + ":")

    def spin(self, vf, sf, sexp):
        e = self.P.e
        l, ok = self.lab("sp"), self.lab("ok")
        e(l + ":")
        e(f"buffer_load_dword {vP}, {vf}, {WS}, {sf} offen sc1\ns_waitcnt vmcnt(0)")
        e(f"v_cmp_gt_u32 vcc, {sexp}, {vP}\ns_cbranch_vccz {ok}")
        e(f"s_add_u32 {sTO}, {sTO}, 1\ns_cmp_lt_u32 {sTO}, {LIMIT}\ns_cbranch_scc1 {l}")
        e(ok + ":")

    def check_items(self, vreg, vf, sf, sexp):
        ok, l = self.lab("ok"), self.lab("sp")
        it = [I(f"v_cmp_gt_u32 vcc, {sexp}, {vreg}"), I(f"s_cbranch_vccz {ok}")]
        slow = [I(l + ":"), I(f"buffer_load_dword {vreg}, {vf}, {WS}, {sf} offen sc1"), I("s_waitcnt vmcnt(0)"),
                I(f"v_cmp_gt_u32 vcc, {sexp}, {vreg}"), I(f"s_cbranch_vccz {ok}"),
                I(f"s_add_u32 {sTO}, {sTO}, 1"), I(f"s_cmp_lt_u32 {sTO}, {LIMIT}"), I(f"s_cbranch_scc1 {l}")]
        for i in slow:
            i.cond = True
        return it + slow + [I(ok + ":")]

    def flag_items(self, saddr, sval, st):
        return [I(f"v_mov_b32 {vFV}, {sval}"), I(f"buffer_store_dword {vFV}, {vZERO}, {WS}, {saddr} offen {st}")]

    def stats_loads(self, base, soff):
        return [I(f"buffer_load_dwordx4 {vr(base+4*i, 4)}, {vSO}, {WS}, {soff} offen offset:{i*1024} sc1") for i in range(4)]

    def stats_calc(self, b):
        t = []
        a = t.append
        for i in (2, 4, 6):
            pass
        a(I(f"v_pk_add_f32 {vr(b,2)}, {vr(b,2)}, {vr(b+2,2)}"))
        a(I(f"v_pk_add_f32 {vr(b+4,2)}, {vr(b+4,2)}, {vr(b+6,2)}"))
        a(I(f"v_pk_add_f32 {vr(b+8,2)}, {vr(b+8,2)}, {vr(b+10,2)}"))
        a(I(f"v_pk_add_f32 {vr(b+12,2)}, {vr(b+12,2)}, {vr(b+14,2)}"))
        a(I(f"v_pk_add_f32 {vr(b,2)}, {vr(b,2)}, {vr(b+4,2)}"))
        a(I(f"v_pk_add_f32 {vr(b+8,2)}, {vr(b+8,2)}, {vr(b+12,2)}"))
        a(I(f"v_pk_add_f32 {vr(b,2)}, {vr(b,2)}, {vr(b+8,2)}"))
        a(I(f"v_mov_b32 v{b+2}, v{b}"))
        a(I(f"v_mov_b32 v{b+3}, v{b+1}"))
        a(I(f"v_permlane32_swap_b32 v{b}, v{b+2}"))
        a(I(f"v_permlane32_swap_b32 v{b+1}, v{b+3}"))
        a(I(f"v_add_f32 v{b}, v{b}, v{b+2}"))
        a(I(f"v_add_f32 v{b+1}, v{b+1}, v{b+3}"))
        a(I(f"v_mul_f32 v{b}, {f32(-1/512)}, v{b}"))
        a(I(f"v_mul_f32 v{b+1}, {f32(1/512)}, v{b+1}"))
        a(I(f"v_fma_f32 v{b+1}, -v{b}, v{b}, v{b+1}"))
        a(I(f"v_max_f32 v{b+1}, 0, v{b+1}"))
        a(I(f"v_add_f32 v{b+1}, {f32(1e-5)}, v{b+1}"))
        a(I(f"v_rsq_f32 v{b+2}, v{b+1}"))
        return t

    def norm_qk(self, acc, c, nm, rs, dst):
        t = [I(f"v_fma_f32 v{acc+i}, v{nm}, v{c+i}, v{acc+i}") for i in range(4)]
        t += [I(f"v_mul_f32 v{acc+i}, v{rs}, v{acc+i}") for i in range(4)]
        t += [I(f"v_cvt_pk_bf16_f32 v{dst+i}, v{acc+2*i}, v{acc+2*i+1}") for i in range(2)]
        return t

    def norm_v(self, acc, c, sv, dst):
        t = [I(f"v_fma_f32 v{acc+i}, v{sv+i}, {c}, v{acc+i}") for i in range(4)]
        t += [I(f"v_mul_f32 v{acc+i}, v{sv+4+i}, v{acc+i}") for i in range(4)]
        t += [I(f"v_cvt_pk_bf16_f32 v{dst+i}, v{acc+2*i}, v{acc+2*i+1}") for i in range(2)]
        return t

    def attn(self, h, b, T):
        kp = rKP + 6 * h + 2 * b
        q = rACC + 8 * h + 4 * b
        vw = rVP + 6 * h + 2 * b
        mp = rMP0 if b == 0 else rMP
        s, m, t2, p, o, l = T, T + 8, T + 9, T + 10, T + 14, T + 18
        g = []
        g.append([I(f"v_mfma_f32_16x16x16_bf16 {vr(s,4)}, {vr(kp,2)}, {vr(q,2)}, {vr(mp,4)}"),
                  I(f"v_mfma_f32_16x16x16_bf16 {vr(s+4,4)}, {vr(kp+2,2)}, {vr(q,2)}, {vr(rMC,4)}")])
        g.append([I(f"v_max3_f32 v{m}, v{s}, v{s+1}, v{s+2}"), I(f"v_max3_f32 v{t2}, v{s+3}, v{s+4}, v{s+5}"),
                  I(f"v_max3_f32 v{m}, v{m}, v{s+6}, v{s+7}"), I(f"v_max_f32 v{m}, v{m}, v{t2}"), I(f"v_mov_b32 v{t2}, v{m}")])
        g.append([I(f"v_permlane32_swap_b32 v{m}, v{t2}"), I(f"v_max_f32 v{m}, v{m}, v{t2}"), I(f"v_mov_b32 v{t2}, v{m}")])
        g.append([I(f"v_permlane16_swap_b32 v{m}, v{t2}"), I(f"v_max_f32 v{m}, v{m}, v{t2}")])
        g.append([I(f"v_sub_f32 v{s+i}, v{s+i}, v{m}") for i in range(8)])
        g.append([I(f"v_exp_f32 v{s+i}, v{s+i}") for i in range(8)])
        g.append([I(f"v_cvt_pk_bf16_f32 v{p+i}, v{s+2*i}, v{s+2*i+1}") for i in range(4)])
        g.append([I(f"v_mfma_f32_16x16x32_bf16 {vr(l,4)}, {vr(rONE,4)}, {vr(p,4)}, 0"),
                  I(f"v_mfma_f32_16x16x32_bf16 {vr(o,4)}, {vr(vw,4)}, {vr(p,4)}, 0")])
        g.append([I(f"v_rcp_f32 v{l}, v{l}")])
        g.append([I(f"v_mul_f32 v{o+i}, v{l}, v{o+i}") for i in range(4)])
        g.append([I(f"v_cvt_pk_bf16_f32 v{rOB+4*b+2*h+i}, v{o+2*i}, v{o+2*i+1}") for i in range(2)])
        return g

    def qkv(self, other=None):
        P, e, st = self.P, self.P.e, self.st
        A = lambda cb, b: rACC + 8 * cb + 4 * b
        AH = rACC + 48
        e(f"L{self.pfx}_top:")
        self.spin(vF16, sFDR, sLAY)
        l = self.begin_cond(f"s_cmp_eq_u32 {sISH}, 0\ns_cbranch_scc1")
        P.add(self.flag_items(sFHW, sLAY, "sc1"))
        self.end_cond(l)
        e(f"L{self.pfx}_entry:")
        self.stamp(0)
        P.add(self.stats_loads(rT, sSAR))
        for c in range(16):
            if c % 4 == 0:
                e(f"s_add_u32 {sT0}, {sXAR}, {c*1024}\ns_add_u32 {sT1}, {sXAR}, {c*1024+16384}")
            for b in range(2):
                e(f"buffer_load_dwordx4 {ar(8*c+4*b,4)}, {vL0}, {WS}, {(sT0,sT1)[b]} offen offset:{(c&3)*1024} sc1")
            if c == 9:
                e(f"buffer_load_dword {vPH}, {vF16}, {WS}, {sFHR} offen sc1")
        P.wait(("QA", "QB", "QC", "QD"))
        e("s_barrier")
        st1 = ["QA", "QB", "QC", "QD"]
        for i in range(4):
            P.add(dsr(rWB + 4 * i, "L", SLOT[st1[i]] * 16384))
        sc = self.stats_calc(rT)
        sc += [I(f"v_cndmask_b32 v{rT+3}, v{rT}, v{rT+2}, s[{sSV}:{sSV+1}]"), I(f"ds_write_b32 {vSTW}, v{rT+3}")]
        sc += [I(f"ds_read2_b32 {vr(rSQ+2*b,2)}, {vSTQ} offset0:{16*b} offset1:{32+16*b}") for b in range(2)]
        sc += [I(f"ds_read_b128 {vr(rSV+8*b+4*k,4)}, {vSTV} offset:{64*b+128*k}") for b in range(2) for k in range(2)]
        sc += [I(f"v_mul_f32 v{rSQ+4+b}, {f32(0.25*LOG2E)}, v{rSQ+2*b+1}") for b in range(2)]
        mf, gaps = [], []
        for c in range(16):
            wb = rWB + 16 * (c & 1)
            nb = rWB + 16 * ((c + 1) & 1)
            for i in range(4):
                for b in range(2):
                    acc = vr(A(i, b), 4)
                    x, w = ar(8 * c + 4 * b, 4), vr(wb + 4 * i, 4)
                    a_, b_ = (x, w) if i == 3 else (w, x)
                    pre = []
                    if i == 0 and b == 0:
                        pre = [W(regs=[vr(wb, 8), ar(8 * c, 8)])]
                    if i == 2 and b == 0:
                        pre = [W(regs=vr(wb + 8, 8))]
                    mf.append(pre + [I(f"v_mfma_f32_16x16x32_bf16 {acc}, {a_}, {b_}, {acc if c else 0}")])
                    g = []
                    if b == 0:
                        if c < 15:
                            g.append(dsr(nb + 4 * i, "L", SLOT[st1[i]] * 16384 + (c + 1) * 1024))
                    gaps.append(g)
        sprinkle(gaps, sc, 2, 40)
        hal = [self.check_items(vPH, vF16, sFHR, sLAY)] + dma_stage("QH") + self.stats_loads(rT, sHSR)
        sprinkle(gaps, hal, 8 * 11, 8 * 14)
        for m_, g in zip(mf, gaps):
            P.add(m_)
            P.add(g)
        l = self.begin_cond(f"s_cmp_lg_u32 {sLAY}, 0\ns_cbranch_scc1")
        for nme in ("O0", "O1"):
            P.add(dma_stage(nme))
        e(f"v_add_f32 v{rT+20}, v{rT+20}, v{rT+21}\nv_add_f32 v{rT+22}, v{rT+22}, v{rT+23}\nv_add_f32 v{rT+20}, v{rT+20}, v{rT+22}")
        e(f"v_min_u32 v{rT+16}, 0x200, v{rT+16}\nv_add_u32 v{rT+16}, {CQL}, v{rT+16}\nds_write_b32 v{rT+16}, v{rT+20}")
        for k in (0, 2, 4, 6):
            e(f"v_add_f32 v{rT+24+k}, v{rT+24+k}, v{rT+25+k}")
        e(f"v_add_f32 v{rT+24}, v{rT+24}, v{rT+26}\nv_add_f32 v{rT+28}, v{rT+28}, v{rT+30}\nv_add_f32 {vCSG}, v{rT+24}, v{rT+28}")
        e("s_waitcnt lgkmcnt(0)")
        self.end_cond(l)
        self.stamp(1)
        P.wait(("QE", "QF"))
        e("s_barrier")
        l = self.begin_cond(f"s_cmp_lg_u32 {sLAY}, 0\ns_cbranch_scc1")
        e(f"s_lshl_b32 {sT3}, {sW}, 9\ns_sub_u32 {sT3}, {sT3}, {CQL - ST}")
        e(f"v_subrev_u32 v{rT+16}, {sT3}, {vSTV}\nv_subrev_u32 v{rT+17}, {sT3}, {vSTQ}")
        for k, stg in enumerate((0, 1, 2, 4)):
            e(f"ds_read_b128 {vr(rCQ+4*k,4)}, v{rT+16} offset:{stg*64}")
        e(f"ds_read_b32 {vCV0}, v{rT+17} offset:{3*64}\nds_read_b32 {vCV1}, v{rT+17} offset:{5*64}")
        e(f"s_lshl_b32 {sT3}, {sW}, 6\nv_add_u32 v{rT+16}, {sT3}, v{rT+16}\nv_add_u32 v{rT+17}, {sT3}, v{rT+17}")
        e(f"ds_read_b128 {vr(rCH,4)}, v{rT+16} offset:128\nds_read_b32 v{rT+18}, v{rT+17} offset:128")
        e(f"s_waitcnt lgkmcnt(0)\ns_bitcmp1_b32 {sW}, 0\ns_cselect_b64 vcc, -1, 0")
        for i in range(4):
            e(f"v_cndmask_b32 v{rCH+i}, v{rCH+i}, v{rT+18}, vcc")
        self.end_cond(l)
        e(f"buffer_load_dword {vPX}, {vF16}, {WS}, {sFXR} offen sc1")
        st2 = ["QE", "QF"]
        for i in range(2):
            P.add(dsr(rWB + 4 * i, "L", SLOT[st2[i]] * 16384))
        mf, gaps = [], []
        HB = rWB + 16
        for c in range(16):
            wb = rWB + 8 * (c & 1)
            nb = rWB + 8 * ((c + 1) & 1)
            for i in range(2):
                for b in range(2):
                    acc = vr(A(4 + i, b), 4)
                    x, w = ar(8 * c + 4 * b, 4), vr(wb + 4 * i, 4)
                    a_, b_ = (x, w) if i == 1 else (w, x)
                    pre = [W(regs=vr(wb, 8))] if (i == 0 and b == 0) else []
                    mf.append(pre + [I(f"v_mfma_f32_16x16x32_bf16 {acc}, {a_}, {b_}, {acc if c else 0}")])
                    g = []
                    if b == 0 and c < 15:
                        g.append(dsr(nb + 4 * i, "L", SLOT[st2[i]] * 16384 + (c + 1) * 1024))
                    if c == 7 and i == 1 and b == 1:
                        g += [W("QH"), I("s_barrier")]
                        for k in range(2):
                            g += [I(f"ds_read_b128 {vr(HB+8*k,4)}, {vHA} offset:{k*1024}"), I(f"ds_read_b128 {vr(HB+8*k+4,4)}, {vHB} offset:{k*1024}")]
                    gaps.append(g)
                if c >= 8:
                    hc = 2 * (c - 8) + i
                    hb = HB + 8 * (hc & 1)
                    mf.append([I(f"v_mfma_f32_16x16x32_bf16 {vr(AH,4)}, {vr(hb,4)}, {vr(hb+4,4)}, {vr(AH,4) if hc else 0}")])
                    g = []
                    if hc + 2 < 16:
                        g = [I(f"ds_read_b128 {vr(hb,4)}, {vHA} offset:{(hc+2)*1024}"), I(f"ds_read_b128 {vr(hb+4,4)}, {vHB} offset:{(hc+2)*1024}")]
                    gaps.append(g)
        fill = dma_stage("O2") + dma_stage("O3")
        for b in range(2):
            fill += self.norm_qk(A(2, b), rCQ + 8, rSQ + 2 * b, rSQ + 2 * b + 1, rKP + 2 + 2 * b)
            fill += self.norm_v(A(3, b), vCV0, rSV + 8 * b, rVP + 2 + 2 * b)
        fill += self.norm_qk(A(0, 1), rCQ, rSQ + 2, rSQ + 5, A(0, 1))
        fill += [I(f"ds_write_b64 {vEW}, {vr(rKP+4,2)}"), I(f"ds_write_b64 {vEW}, {vr(rVP+4,2)} offset:8")]
        hs = self.stats_calc(rT)
        hs += [I(f"v_cndmask_b32 v{rT+3}, v{rT}, v{rT+2}, s[{sSV}:{sSV+1}]"), I(f"ds_write_b32 {vSTW}, v{rT+3} offset:256")]
        fill += self.norm_qk(A(0, 0), rCQ, rSQ, rSQ + 4, A(0, 0))
        fill += hs
        at = [i for g in self.attn(0, 1, rT + 8) for i in g]
        rest = self.norm_qk(A(1, 0), rCQ + 4, rSQ, rSQ + 4, A(1, 0)) + self.norm_qk(A(1, 1), rCQ + 4, rSQ + 2, rSQ + 5, A(1, 1))
        wv = []
        for k, i in enumerate(at):
            wv.append(i)
            if rest and (i.kind == "mfma" or i.op.startswith("v_mov") or i.op.startswith("v_rcp")):
                wv += rest[:3]
                rest = rest[3:]
        fill += wv + rest
        sprinkle(gaps, fill, 0, len(gaps) - 2)
        for m_, g in zip(mf, gaps):
            P.add(m_)
            P.add(g)
        self.stamp(2)
        l = self.begin_cond(f"s_bitcmp1_b32 {sW}, 0\ns_cbranch_scc1")
        e(f"ds_read2_b32 {vr(rT,2)}, {vSTQ} offset0:{64+16} offset1:{64+32+16}")
        e(f"s_waitcnt lgkmcnt(0)")
        for i in range(1, 4):
            e(f"v_mov_b32 v{rT+4+i}, v{rT+1}")
        e(f"v_mov_b32 v{rT+4}, v{rT+1}")
        for i in range(1, 4):
            e(f"v_mov_b32 v{rT+i}, v{rT}")
        self.end_cond(l)
        l = self.begin_cond(f"s_cbranch_scc0")
        e(f"ds_read_b128 {vr(rT,4)}, {vSTV} offset:{256+64}\nds_read_b128 {vr(rT+4,4)}, {vSTV} offset:{256+64+128}")
        e(f"s_waitcnt lgkmcnt(0)")
        self.end_cond(l)
        P.add(self.norm_qk(A(4, 1), rCQ + 12, rSQ + 2, rSQ + 3, rKP + 6 + 4))
        P.add(self.norm_v(A(5, 1), vCV1, rSV + 8, rVP + 6 + 4))
        e(f"ds_write_b64 {vEW}, {vr(rKP+10,2)} offset:1024\nds_write_b64 {vEW}, {vr(rVP+10,2)} offset:1032")
        for i in range(4):
            e(f"v_fma_f32 v{AH+i}, v{rT+i}, v{rCH+i}, v{AH+i}")
        for i in range(4):
            e(f"v_mul_f32 v{AH+i}, v{rT+4+i}, v{AH+i}")
        for i in range(2):
            e(f"v_cvt_pk_bf16_f32 v{AH+i}, v{AH+2*i}, v{AH+2*i+1}")
        e(f"ds_write_b64 {vEH}, {vr(AH,2)}")
        P.add(self.norm_qk(A(4, 0), rCQ + 12, rSQ, rSQ + 1, rKP + 6 + 2))
        P.add(self.norm_v(A(5, 0), vCV1, rSV, rVP + 6 + 2))
        P.wait(("O0", "O1", "O2", "O3"))
        e("s_waitcnt lgkmcnt(0)\ns_barrier")
        for h in range(2):
            e(f"ds_read_b64 {vr(rKP+6*h,2)}, {vER} offset:{1024*h}\nds_read_b64 {vr(rVP+6*h,2)}, {vER} offset:{1024*h+8}")
        ga, gb, gc = self.attn(1, 1, rT), self.attn(0, 0, rWB), self.attn(1, 0, rACC + 16)
        for x, y, z in zip(ga, gb, gc):
            P.add(x)
            P.add(y)
            P.add(z)
        if other:
            l = self.begin_cond(f"s_cmp_lg_u32 {sLAY}, 0\ns_cbranch_scc1")
            P.add(self.check_items(vPX, vF16, sFXR, "1"))
            e(f"v_cmp_ne_u32 vcc, {sXCC}, {vPX}\ns_cbranch_vccnz L{other}_mode")
            self.end_cond(l)
        e(f"L{self.pfx}_mode:")
        self.mode_at = len(P.L)
        e(f"s_add_u32 {sT0}, {sOW}, 16384")
        e(f"buffer_store_dwordx4 {vr(rOB,4)}, {vL0}, {WS}, {sOW} offen {st}", tag="o")
        e(f"buffer_store_dwordx4 {vr(rOB+4,4)}, {vL0}, {WS}, {sT0} offen {st}", tag="o")
        P.add(dma_stage("G0"))
        P.wait("o")
        P.add(self.flag_items(sFQW, sEXP, st))
        self.stamp(3)
        for nme in ("G1", "G2", "G3"):
            P.add(dma_stage(nme))

    def acc_init(self):
        t = []
        for i in range(8):
            t.append(I(f"v_lshlrev_b32 v{rACC+2*i}, 16, v{rRES+i}"))
            t.append(I(f"v_and_b32 v{rACC+2*i+1}, 0xffff0000, v{rRES+i}"))
        return t

    def kloop(self, nsteps, stage, xreg, extra):
        P = self.P
        AK, AS = vr(rACC, 16), vr(rACC + 16, 16)
        addr = lambda n: SLOT[stage(n >> 3)] * 16384 + ((n >> 1) & 3) * 2048
        rd = lambda n: dsr(rWB + 4 * (n & 7), "KS"[n & 1], addr(n))
        N = 2 * nsteps
        for n in range(4):
            P.add(rd(n))
        for n in range(N):
            if n % 2 == 0:
                P.wait(regs=[vr(rWB + 4 * (n & 7), 8), ar(xreg(n >> 1), 4)])
            acc = AK if n % 2 == 0 else AS
            c = "0" if n == 1 else acc
            P.e(f"v_mfma_f32_32x32x16_bf16 {acc}, {vr(rWB+4*(n&7),4)}, {ar(xreg(n>>1),4)}, {c}")
            if n + 4 < N:
                P.add(rd(n + 4))
            P.add(extra.get(n, []))

    def reduce_tail(self, after_barrier):
        P, e = self.P, self.P.e
        for q in range(4):
            e(f"ds_write_b128 {vXW}, {vr(rACC+16+4*q,4)} offset:{q*1024}")
        e("s_waitcnt lgkmcnt(0)\ns_barrier")
        for q in range(4):
            e(f"ds_read_b128 {vr(rT+4*q,4)}, {vXR} offset:{q*1024}")
        P.add(after_barrier)
        for q in range(8):
            e(f"v_pk_add_f32 {vr(rACC+2*q,2)}, {vr(rACC+2*q,2)}, {vr(rT+2*q,2)}")
        for i in range(8):
            e(f"v_cvt_pk_bf16_f32 v{rRES+i}, v{rACC+2*i}, v{rACC+2*i+1}")

    def row_stats(self):
        e = self.P.e
        a, t = rACC, rT
        e(f"v_pk_mul_f32 {vr(t+2,2)}, {vr(a,2)}, {vr(a,2)}\nv_pk_add_f32 {vr(t,2)}, {vr(a,2)}, {vr(a+2,2)}")
        e(f"v_pk_fma_f32 {vr(t+2,2)}, {vr(a+2,2)}, {vr(a+2,2)}, {vr(t+2,2)}")
        for q in range(2, 8):
            e(f"v_pk_add_f32 {vr(t,2)}, {vr(t,2)}, {vr(a+2*q,2)}")
            e(f"v_pk_fma_f32 {vr(t+2,2)}, {vr(a+2*q,2)}, {vr(a+2*q,2)}, {vr(t+2,2)}")
        e(f"v_add_f32 v{t}, v{t}, v{t+1}\nv_add_f32 v{t+2}, v{t+2}, v{t+3}")
        e(f"v_permlane32_swap_b32 v{t}, v{t+2}\nv_add_f32 v{t}, v{t}, v{t+2}")

    def wo(self):
        P, e, st = self.P, self.P.e, self.st
        P.add(self.acc_init())
        self.spin(vF8, sFQR, sEXP)
        self.stamp(4)
        for c in range(16):
            if c % 8 == 0:
                e(f"s_add_u32 {sT0}, {sOR}, {c*512}")
            e(f"buffer_load_dwordx4 {ar(128+4*c,4)}, {vXO}, {WS}, {sT0} offen offset:{(c&7)*512} sc1")
        P.add(dma_stage("G4"))
        e("s_barrier")
        self.kloop(16, lambda s: f"O{s}", lambda c: 128 + 4 * c, {})
        self.stamp(5)
        self.reduce_tail([])
        for j in range(2):
            e(f"buffer_store_dwordx4 {vr(rRES+4*j,4)}, {vXO}, {WS}, {sXBW} offen offset:{j*512} {st}", tag="x1")
        self.row_stats()
        e(f"buffer_store_dword v{rT}, {vSS}, {WS}, {sSBW} offen {st}", tag="x1")
        P.add(dma_stage("G5"))
        P.wait("x1")
        P.add(self.flag_items(sFWW, sEXP, st))
        self.stamp(6)

    def epi(self, j):
        a = rACC + 16 * (j % 3)
        C, T, HBUF = rT, rT + 16, rT + 24 + 4 * (j & 1)
        t = [I(f"ds_read_b128 {vr(C+4*q,4)}, {vSTV} offset:{j*128+q*32}") for q in range(4)]
        t += [I(f"v_fma_f32 v{a+r}, {vNM}, v{C+r}, v{a+r}") for r in range(8)]
        t += [I(f"v_mul_f32 v{T+r}, {vKK}, v{a+r}") for r in range(8)]
        for r in range(8):
            t += [I(f"v_exp_f32 v{T+r}, v{T+r}"), I(f"v_fma_f32 v{a+8+r}, {vNM}, v{C+8+r}, v{a+8+r}")]
        t += [I(f"v_fma_f32 v{T+r}, v{T+r}, {vVP}, {vVP}") for r in range(8)]
        for r in range(8):
            t += [I(f"v_rcp_f32 v{T+r}, v{T+r}"), I(f"v_mul_f32 v{a+r}, v{a+r}, v{a+8+r}")]
        t += [I(f"v_mul_f32 v{a+r}, v{a+r}, v{T+r}") for r in range(8)]
        t += [I(f"v_cvt_pk_bf16_f32 v{HBUF+i}, v{a+2*i}, v{a+2*i+1}") for i in range(4)]
        t += [I(f"buffer_store_dwordx4 {vr(HBUF,4)}, {vHO}, {WS}, {sHW} offen offset:{j*512} {self.st}", tag=f"h{j}")]
        return t

    def hflag(self, j):
        return [W(f"h{j}"), I(f"s_add_u32 {sT3}, {sGEXP}, {j+1}")] + self.flag_items(sFGW, sT3, self.st)

    def hloads(self, b):
        base = 128 + 32 * b if b < 4 else 32 * (b - 4)
        t = []
        for i in range(8):
            t.append([I(f"s_add_u32 {sT2}, {sHR}, {i*3584}"),
                      I(f"buffer_load_dwordx4 {ar(base+4*i,4)}, {vHO}, {WS}, {sT2} offen offset:{b*512} sc1")])
        return t

    def hpoll(self):
        return I(f"buffer_load_dword {vPH}, {vF8}, {WS}, {sFGR} offen sc1")

    def hcheck(self, n):
        return [I(f"s_add_u32 {sT3}, {sGEXP}, {n}")] + self.check_items(vPH, vF8, sFGR, sT3)

    def gu(self):
        P, e = self.P, self.P.e
        self.spin(vF16, sFWR, sEXP)
        self.stamp(7)
        P.add(self.stats_loads(rT, sSBR))
        for c in range(32):
            if c % 8 == 0:
                e(f"s_add_u32 {sT0}, {sXBR}, {c*512}")
            e(f"buffer_load_dwordx4 {ar(4*c,4)}, {vXO}, {WS}, {sT0} offen offset:{(c&7)*512} sc1")
        P.wait(("G0", "G1", "G2", "G3"))
        e("s_barrier")
        e(f"v_lshlrev_b32 v{rT+16}, 2, v0\nv_add_u32 v{rT+16}, {CGL}, v{rT+16}\nds_write_b32 v{rT+16}, {vCSG}")
        N = 224
        frag = lambda n: SLOT[f"G{n >> 4}"] * 16384 + (n & 15) * 1024
        rd = lambda n: dsr(rWB + 4 * (n & 7), "L", frag(n))
        mf, gaps = [], []
        for n in range(N):
            j, c = (n & 1, n >> 1) if n < 64 else (n >> 5, n & 31)
            acc = vr(rACC + 16 * (j % 3), 16)
            pre = []
            if n % 2 == 0:
                rr = [vr(rWB + 4 * (n & 7), 8)]
                if n < 64:
                    rr.append(ar(4 * c, 4))
                pre = [W(regs=rr)]
            mf.append(pre + [I(f"v_mfma_f32_32x32x16_bf16 {acc}, {vr(rWB+4*(n&7),4)}, {ar(4*c,4)}, {acc if c else 0}")])
            gaps.append([rd(n + 4)] if n + 4 < N else [])
        bars = [(31, ("G4", "G5"), ("G9", "G10")), (63, ("G6", "G7"), ("G11", "G12")), (95, ("G8", "G9"), ("G13", "D0")),
                (127, ("G10", "G11"), ("D1", "D2")), (159, ("G12", "G13"), ("D3", "D4")), (191, (), ("D5", "D6")),
                (223, ("D0", "D1", "D2", "D3"), ("D7", "D8"))]
        sc = self.stats_calc(rT) + [I(f"v_mov_b32 {vNM}, v{rT}"), I(f"v_mov_b32 {vVP}, v{rT+1}"),
                                    I(f"v_mul_f32 {vKK}, {f32(-LOG2E)}, v{rT+2}")]
        sprinkle(gaps, dma_stage("G6") + dma_stage("G7") + dma_stage("G8"), 1, 24)
        sprinkle(gaps, sc, 4, 24)
        for g, land, fetch in bars:
            gaps[g] += [W(land), I("s_barrier")]
            if g < 223:
                sprinkle(gaps, [x for s_ in fetch for x in dma_stage(s_)], g + 1, g + 25)
        gaps[150].append(self.hpoll())
        gaps[161] += self.hcheck(2)
        sprinkle(gaps, self.hloads(0) + self.hloads(1), 162, 190)
        gaps[186].append(self.hpoll())
        gaps[196] += self.hcheck(3)
        sprinkle(gaps, self.hloads(2), 197, 220)
        for j in range(6):
            lo = 64 + (160 * j) // 6 + 1
            hi = 64 + (160 * (j + 1)) // 6 + 1
            lo = max(lo, 32 * (j + 1) + 3 if j >= 2 else lo)
            items = self.epi(j)
            if j:
                items = items[:30] + [self.hflag(j - 1)] + items[30:]
            sprinkle(gaps, items, lo, min(hi, 223))
        e(f"v_and_b32 {vSTV}, 32, v0\nv_lshrrev_b32 {vSTV}, 1, {vSTV}\nv_add_u32 {vSTV}, {CGL}, {vSTV}")
        for n in range(4):
            P.add(rd(n))
        for m_, g in zip(mf, gaps):
            P.add(m_)
            P.add(g)
        self.stamp(8)
        P.add(self.hpoll())
        P.add([x for s_ in ("D7", "D8") for x in dma_stage(s_)])
        ep = self.epi(6)
        P.add(ep[:30])
        P.add(self.hflag(5))
        P.add(ep[30:])
        e(f"v_lshrrev_b32 {vSTV}, 4, v0\nv_and_b32 {vSTV}, 3, {vSTV}\nv_lshlrev_b32 {vSTV}, 4, {vSTV}")
        e(f"s_lshl_b32 {sT3}, {sW}, 9\ns_add_u32 {sT3}, {sT3}, {ST}\nv_add_u32 {vSTV}, {sT3}, {vSTV}")
        P.add(self.hcheck(4))
        P.add(self.hloads(3))
        P.add(self.acc_init())
        P.add(self.hflag(6))
        self.stamp(9)

    def down(self):
        P, e, st = self.P, self.P.e, self.st
        gaps = [[] for _ in range(112)]
        bars = [(15, ("D4", "D5"), ("D9", "D10")), (31, ("D6", "D7"), ("D11", "D12")), (47, ("D8", "D9"), ("D13", "QC")),
                (63, ("D10", "D11"), ("QD", "QE")), (79, ("D12", "D13"), ("QF", "O0")), (95, (), ("QA", "QB"))]
        gaps[0].append(self.hpoll())
        gaps[8] += self.hcheck(5)
        sprinkle(gaps, self.hloads(4), 9, 15)
        gaps[14].append(self.hpoll())
        gaps[26] += self.hcheck(7)
        sprinkle(gaps, self.hloads(5) + self.hloads(6), 27, 56)
        for g, land, fetch in bars:
            gaps[g] += [W(land), I("s_barrier")]
            sprinkle(gaps, [x for s_ in fetch for x in dma_stage(s_)], g + 1, g + 15)
        xreg = lambda s: 128 + 4 * s if s < 32 else 4 * (s - 32)
        self.kloop(56, lambda s: f"D{s}", xreg, dict(enumerate(gaps)))
        self.stamp(10)
        self.reduce_tail([])
        last = self.lab("last")
        e(f"s_cmp_lg_u32 {sLAY}, 0\ns_cbranch_scc1 {last}")
        for j in range(2):
            e(f"buffer_store_dwordx4 {vr(rRES+4*j,4)}, {vXO}, {WS}, {sXAW} offen offset:{j*512} {st}", tag="x2")
        self.row_stats()
        e(f"buffer_store_dword v{rT}, {vSS}, {WS}, {sSAW} offen {st}", tag="x2")
        P.wait("x2")
        P.add(self.flag_items(sFDW, sEXP, st))
        l = self.begin_cond(f"s_cmp_eq_u32 {sISH}, 0\ns_cbranch_scc1")
        for j in range(2):
            e(f"buffer_store_dwordx4 {vr(rRES+4*j,4)}, {vXO}, {WS}, {sHXW} offen offset:{j*512} sc1")
        e(f"buffer_store_dword v{rT}, {vSS}, {WS}, {sHSW} offen sc1")
        self.end_cond(l)
        P.add(dma_stage("O1"))
        self.stamp(11)
        for r in (sXAR, sSAR, sOW, sOR, sXBW, sSBW, sXBR, sSBR, sHW, sHR):
            e(f"s_add_u32 {r}, {r}, {LS}")
        e(f"s_lshl_b32 {sT0}, {sG}, 15\ns_add_u32 {sT0}, {sT0}, {HX + 16384}\ns_add_u32 {sHXR}, {sT0}, {sLW}")
        e(f"s_lshl_b32 {sT0}, {sG}, 12\ns_add_u32 {sHSR}, {sT0}, {HS}")
        e(f"s_mov_b32 {sLAY}, 1\ns_mov_b32 {sEXP}, 2\ns_mov_b32 {sGEXP}, 8")
        e(f"s_branch L{self.pfx}_top")
        self.loop_end = len(P.L)
        e(last + ":")
        for j in range(2):
            e(f"v_permlane32_swap_b32 v{rRES+4*j}, v{rRES+4*j+2}\nv_permlane32_swap_b32 v{rRES+4*j+1}, v{rRES+4*j+3}")
        for j in range(2):
            e(f"buffer_store_dwordx4 {vr(rRES+4*j,4)}, {vOUTO}, s[8:11], {sOUT} offen offset:{j*32}")
        if self.stamps:
            self.stamp(11)
            e(f"s_lshl_b32 {sT0}, s2, 2\ns_add_u32 {sT0}, {sT0}, {sW}\ns_lshl_b32 {sT0}, {sT0}, 8\ns_add_u32 {sT0}, {sT0}, {STAMP}")
            e(f"v_lshrrev_b32 v{rT}, 2, {vL0}\nv_writelane_b32 {vSTAMP}, {sTO}, 63")
            e(f"buffer_store_dword {vSTAMP}, v{rT}, {WS}, {sT0} offen")
        e("s_endpgm")

    def build(self, other):
        self.qkv(other)
        self.wo()
        self.gu()
        self.down()


def prologue(opts):
    P = Prog()
    e = P.e
    stamps = int(opts.get("stamps", 0))
    if stamps:
        e(f"s_memtime s[{sTM}:{sTM+1}]")
    e("s_cmp_ge_u32 s2, 256\ns_cbranch_scc1 Lm_exit")
    e("s_load_dwordx2 s[4:5], s[0:1], 72\ns_load_dwordx2 s[8:9], s[0:1], 56")
    e(f"v_lshrrev_b32 v1, 6, v0\nv_readfirstlane_b32 {sW}, v1")
    e(f"v_and_b32 v{rT}, 63, v0\nv_lshlrev_b32 {vL0}, 4, v{rT}")
    e(f"s_lshr_b32 {sT0}, s2, 3\ns_and_b32 {sM}, {sT0}, 15\ns_lshr_b32 {sT0}, {sT0}, 4")
    e(f"s_and_b32 {sG}, s2, 7\ns_lshl_b32 {sG}, {sG}, 1\ns_add_u32 {sG}, {sG}, {sT0}")
    e(f"s_lshl_b32 {sLW}, {sW}, 12")
    e(f"s_mul_i32 {sWQ}, {sM}, {96*1024}\ns_add_u32 {sWQ}, {sWQ}, {sLW}")
    e("s_mov_b32 s6, 0x10000000\ns_mov_b32 s7, 0x20000\ns_mov_b32 s10, 0x200000\ns_mov_b32 s11, 0x20000")
    e("s_waitcnt lgkmcnt(0)\ns_and_b32 s5, s5, 0xffff\ns_and_b32 s9, s9, 0xffff")
    for nme in ("QA", "QB", "QC", "QD"):
        P.add(dma_stage(nme))
    if stamps:
        e(f"v_mov_b32 {vSTAMP}, 0\nv_writelane_b32 {vSTAMP}, s{sTM}, 62")
    e(f"s_and_b32 {sCT}, {sM}, 7\ns_lshr_b32 {sRH}, {sM}, 3\ns_and_b32 {sMH}, {sW}, 1\ns_lshr_b32 {sKH}, {sW}, 1")
    e(f"s_mov_b32 {sLAY}, 0\ns_mov_b32 {sEXP}, 1\ns_mov_b32 {sGEXP}, 0\ns_mov_b32 {sTO}, 0")
    e(f"s_lshl_b32 {sWO}, {sCT}, 16\ns_add_u32 {sWO}, {sWO}, {sLW}\ns_add_u32 {sWO}, {sWO}, {WO}")
    e(f"s_mul_i32 {sWG}, {sM}, {224*1024}\ns_add_u32 {sWG}, {sWG}, {sLW}\ns_add_u32 {sWG}, {sWG}, {WG}")
    e(f"s_mul_i32 {sWD}, {sCT}, {224*1024}\ns_add_u32 {sWD}, {sWD}, {sLW}\ns_add_u32 {sWD}, {sWD}, {WD}")
    e(f"s_lshl_b32 {sT0}, {sG}, 2\ns_lshl_b32 {sT1}, {sRH}, 1\ns_add_u32 {sT1}, {sT1}, {sMH}\ns_add_u32 {sT1}, {sT1}, {sT0}\ns_add_u32 {sT0}, {sT0}, {sW}")
    e(f"s_lshl_b32 {sT2}, {sT0}, 15\ns_add_u32 {sXAR}, {sT2}, {ACT+XA}\ns_add_u32 {sXBR}, {sT2}, {ACT+XB}")
    e(f"s_lshl_b32 {sT3}, {sM}, 10\ns_add_u32 {sOW}, {sT2}, {sT3}\ns_add_u32 {sOW}, {sOW}, {ACT+OO}")
    e(f"s_lshl_b32 {sT2}, {sT0}, 12\ns_add_u32 {sSAR}, {sT2}, {ACT+SA}\ns_add_u32 {sSBR}, {sT2}, {ACT+SB}")
    e(f"s_mul_i32 {sHW}, {sT0}, {2*PB_H}\ns_mul_i32 {sT2}, {sM}, {14*256}\ns_add_u32 {sHW}, {sHW}, {sT2}\ns_add_u32 {sHW}, {sHW}, {ACT+HH}")
    e(f"s_mul_i32 {sHR}, {sT1}, {2*PB_H}\ns_mul_i32 {sT2}, {sKH}, {56*512}\ns_add_u32 {sHR}, {sHR}, {sT2}\ns_add_u32 {sHR}, {sHR}, {ACT+HH}")
    e(f"s_lshl_b32 {sT2}, {sT1}, 15\ns_lshl_b32 {sT3}, {sKH}, 13\ns_add_u32 {sOR}, {sT2}, {sT3}\ns_add_u32 {sOR}, {sOR}, {ACT+OO}")
    e(f"s_lshl_b32 {sT3}, {sCT}, 1\ns_add_u32 {sT3}, {sT3}, {sKH}\ns_lshl_b32 {sT3}, {sT3}, 10")
    e(f"s_add_u32 {sT2}, {sT2}, {sT3}\ns_add_u32 {sXBW}, {sT2}, {ACT+XB}\ns_add_u32 {sXAW}, {sT2}, {ACT+LS+XA}")
    e(f"s_add_u32 {sT2}, {sG}, 1\ns_and_b32 {sT2}, {sT2}, 15")
    e(f"s_lshl_b32 {sHXW}, {sT2}, 15\ns_add_u32 {sHXW}, {sHXW}, {sT3}\ns_add_u32 {sHXW}, {sHXW}, {HX}")
    e(f"s_lshl_b32 {sFHW}, {sT2}, 12\ns_lshr_b32 {sT3}, {sT3}, 8\ns_add_u32 {sFHW}, {sFHW}, {sT3}\ns_add_u32 {sFHW}, {sFHW}, {FLAGS+FH}")
    e(f"s_lshl_b32 {sT3}, {sCT}, 9\ns_lshl_b32 {sHSW}, {sKH}, 3\ns_add_u32 {sT3}, {sT3}, {sHSW}")
    e(f"s_lshl_b32 {sHSW}, {sT2}, 12\ns_add_u32 {sHSW}, {sHSW}, {sT3}\ns_add_u32 {sHSW}, {sHSW}, {HS}")
    e(f"s_lshl_b32 {sT2}, {sT1}, 12\ns_add_u32 {sT2}, {sT2}, {sT3}\ns_add_u32 {sSBW}, {sT2}, {ACT+SB}\ns_add_u32 {sSAW}, {sT2}, {ACT+LS+SA}")
    e(f"s_add_u32 {sT2}, {sG}, 15\ns_and_b32 {sT2}, {sT2}, 15")
    e(f"s_lshl_b32 {sHXR}, {sT2}, 17\ns_add_u32 {sHXR}, {sHXR}, {sLW}\ns_add_u32 {sHXR}, {sHXR}, {ACT+XA+7*16384}")
    e(f"s_lshl_b32 {sHSR}, {sT2}, 14\ns_add_u32 {sHSR}, {sHSR}, {ACT+SA+3*4096}")
    e(f"s_lshl_b32 {sT2}, {sG}, 12\ns_add_u32 {sT2}, {sT2}, {FLAGS}")
    e(f"s_add_u32 {sFHR}, {sT2}, {FH}\ns_add_u32 {sFXR}, {sT2}, {FX}")
    e(f"s_lshl_b32 {sT3}, {sW}, 7\ns_add_u32 {sT3}, {sT3}, {sT2}\ns_add_u32 {sFWR}, {sT3}, {FW}\ns_add_u32 {sFDR}, {sT3}, {FD}")
    e(f"s_lshl_b32 {sT0}, {sM}, 2\ns_add_u32 {sT3}, {sT3}, {sT0}\ns_add_u32 {sFQW}, {sT3}, {FQ}\ns_add_u32 {sFGW}, {sT3}, {FG}")
    e(f"s_getreg_b32 {sXCC}, hwreg(HW_REG_XCC_ID, 0, 4)\ns_add_u32 {sXCC}, {sXCC}, 1\ns_add_u32 {sT0}, {sT0}, {sFXR}")
    e(f"v_mov_b32 {vZERO}, 0\nv_mov_b32 {vFV}, {sXCC}")
    e(f"buffer_store_dword {vFV}, {vZERO}, {WS}, {sT0} offen sc1")
    e(f"s_and_b32 {sT3}, {sT1}, 3\ns_cmp_eq_u32 {sT3}, 3\ns_cselect_b32 {sISH}, 1, 0\ns_lshl_b32 {sT3}, {sT3}, 7\ns_add_u32 {sT3}, {sT3}, {sT2}")
    e(f"s_lshl_b32 {sT0}, {sKH}, 5\ns_add_u32 {sT0}, {sT0}, {sT3}\ns_add_u32 {sFQR}, {sT0}, {FQ}\ns_add_u32 {sFGR}, {sT0}, {FG}")
    e(f"s_lshl_b32 {sT0}, {sCT}, 1\ns_add_u32 {sT0}, {sT0}, {sKH}\ns_lshl_b32 {sT0}, {sT0}, 2\ns_add_u32 {sT0}, {sT0}, {sT3}")
    e(f"s_add_u32 {sFWW}, {sT0}, {FW}\ns_add_u32 {sFDW}, {sT0}, {FD}")
    e(f"s_and_b32 {sT0}, {sT1}, 31\ns_lshl_b32 {sT0}, {sT0}, 16\ns_lshr_b32 {sOUT}, {sT1}, 5\ns_lshl_b32 {sOUT}, {sOUT}, 10\ns_add_u32 {sOUT}, {sOUT}, {sT0}")
    e(f"s_lshl_b32 {sT0}, {sCT}, 7\ns_add_u32 {sOUT}, {sOUT}, {sT0}\ns_lshl_b32 {sT0}, {sKH}, 6\ns_add_u32 {sOUT}, {sOUT}, {sT0}")
    ln, pos, hi, i16, g, t = (f"v{rT+k}" for k in range(6))
    e(f"v_and_b32 {pos}, 31, {ln}\nv_lshrrev_b32 {hi}, 5, {ln}\nv_and_b32 {i16}, 15, {ln}\nv_lshrrev_b32 {g}, 4, {ln}")
    e(f"v_add_u32 {vL1}, 0x10000, {vL0}\nv_add_u32 {vL2}, 0x20000, {vL0}")
    e(f"v_lshlrev_b32 {t}, 8, {hi}\nv_lshl_add_u32 {t}, {i16}, 4, {t}\nv_and_b32 {vXO}, 1, {g}")
    e(f"v_mul_u32_u24 {vHO}, {PB_H}, {vXO}\nv_add_u32 {vHO}, {vHO}, {t}\nv_lshl_add_u32 {vXO}, {vXO}, 14, {t}")
    e(f"v_lshlrev_b32 {t}, 4, {pos}\nv_lshl_add_u32 {vSO}, {hi}, 9, {t}\nv_lshl_add_u32 {vSS}, {hi}, 2, {t}")
    e(f"v_lshlrev_b32 {vOUTO}, 11, {pos}\nv_lshl_add_u32 {vOUTO}, {hi}, 4, {vOUTO}")
    e(f"s_mul_i32 {sT0}, {sKH}, 9216\ns_mul_i32 {sT2}, {sKH}, 7168\ns_add_u32 {sT2}, {sT2}, 1024")
    for k, (a, b, c) in enumerate(((vK0, vS0, vL0), (vK1, vS1, vL1), (vK2, vS2, vL2))):
        e(f"v_add_u32 {a}, {sT0}, {c}\nv_add_u32 {b}, {sT2}, {c}")
    assert [SLOT[x] for x in ("QC", "QD", "QE", "QF")] == [2, 3, 4, 5]
    e(f"s_add_u32 {sT0}, {sW}, 2\ns_lshl_b32 {sT0}, {sT0}, 14\ns_mov_b32 {sT2}, {SLOT['QH']*16384}")
    e(f"s_bitcmp1_b32 {sW}, 0\ns_cselect_b32 {sT3}, {sT2}, {sT0}\ns_cselect_b32 {sT0}, {sT0}, {sT2}")
    e(f"v_add_u32 {vHA}, {sT3}, {vL0}\nv_add_u32 {vHB}, {sT0}, {vL0}")
    e(f"v_lshlrev_b32 {vF16}, 2, {i16}\nv_and_b32 {vF8}, 28, {vF16}")
    e(f"s_add_u32 {sT0}, {sLW}, {XCH}\nv_add_u32 {vXW}, {sT0}, {vL0}\ns_xor_b32 {sT0}, {sLW}, 8192\ns_add_u32 {sT0}, {sT0}, {XCH}\nv_add_u32 {vXR}, {sT0}, {vL0}")
    e(f"s_lshl_b32 {sT0}, {sW}, 11\ns_add_u32 {sT0}, {sT0}, {EX}\nv_add_u32 {vER}, {sT0}, {vL0}\nv_add_u32 {vEW}, 2048, {vER}")
    e(f"s_lshl_b32 {sT0}, {sKH}, 10\ns_lshl_b32 {sT2}, {sMH}, 3\ns_add_u32 {sT0}, {sT0}, {sT2}\ns_add_u32 {sT0}, {sT0}, {EX}\nv_add_u32 {vEH}, {sT0}, {vL0}")
    e(f"s_lshl_b32 {sT0}, {sW}, 9\ns_add_u32 {sT0}, {sT0}, {ST}")
    e(f"v_lshl_add_u32 {vSTW}, {ln}, 2, {sT0}\nv_add_u32 {vSTQ}, {sT0}, {vF16}\nv_lshl_add_u32 {vSTV}, {g}, 4, {sT0}")
    e(f"s_mov_b32 s{sSV}, 0\ns_mov_b32 s{sSV+1}, -1")
    for i in range(4):
        e(f"v_mov_b32 v{rONE+i}, 0x3f803f80")
    e(f"v_lshlrev_b32 {t}, 2, {g}\nv_sub_u32 {t}, {i16}, {t}\nv_mov_b32 {pos}, {f32(-1e30)}")
    e(f"s_and_b32 {sT0}, {sG}, 7\ns_or_b32 {sT0}, {sT0}, {sW}")
    for i in range(4):
        e(f"v_subrev_u32 {hi}, {i}, {t}\nv_cmp_gt_u32 vcc, 8, {hi}\nv_cndmask_b32 v{rMC+i}, {pos}, {vZERO}, vcc")
        e(f"v_add_u32 {hi}, 16, {hi}\nv_cmp_gt_u32 vcc, 8, {hi}\nv_cndmask_b32 v{rMP+i}, {pos}, {vZERO}, vcc")
    e(f"s_cmp_eq_u32 {sT0}, 0\ns_cselect_b64 vcc, -1, 0")
    for i in range(4):
        e(f"v_cndmask_b32 v{rMP0+i}, v{rMP+i}, {pos}, vcc")
    for nme in ("QE", "QF"):
        P.add(dma_stage(nme))
    e(f"s_mul_i32 {sT0}, {sM}, 1536\ns_add_u32 {sT0}, {sT0}, {CSQ}\ns_mul_i32 {sT1}, {sM}, 7168\ns_add_u32 {sT1}, {sT1}, {CSG}\ns_add_u32 {sT2}, {sT1}, 3584")
    e(f"v_lshlrev_b32 v{rT+16}, 2, v0")
    for p in range(4):
        e(f"buffer_load_dword v{rT+20+p}, v{rT+16}, {WS}, {sT0} offen offset:{p*384}")
    for p in range(8):
        e(f"buffer_load_dword v{rT+24+p}, v{rT+16}, {WS}, {(sT1,sT2)[p>>2]} offen offset:{(p&3)*896}")
    e(f"s_sub_u32 {sT0}, {sXAW}, {LS}")
    for j in range(2):
        e(f"buffer_load_dwordx4 {vr(rRES+4*j,4)}, {vXO}, {WS}, {sT0} offen offset:{j*512}")
    e("s_branch LF_entry")
    e("Lm_exit:\ns_endpgm")
    return P


def gen_main(opts):
    pro = prologue(opts)
    F = Body("F", "", opts)
    F.build("S")
    Sl = Body("S", "sc1", opts)
    Sl.build(None)
    ent = next(k for k, i in enumerate(F.P.L) if i.text == "LF_entry:")
    fl, sl = F.P.L, Sl.P.L
    paths = [pro.L[:-2] + fl[ent:F.loop_end] + fl,
             pro.L[:-2] + fl[ent:F.mode_at] + sl[Sl.mode_at:Sl.loop_end] + sl]
    for B in (F, Sl):
        L = B.P.L
        br = max(k for k, i in enumerate(L[:B.loop_end]) if i.kind == "branch" and "last" in i.text)
        paths.append(L[:br + 1] + L[B.loop_end:])
    finalize(paths)
    text = render(pro.L) + render(fl) + render(sl)
    text += ".fill 64, 4, 0xbf800000\n"
    desc = f""".amdhsa_kernel main_kernel
  .amdhsa_next_free_vgpr 512
  .amdhsa_next_free_sgpr 96
  .amdhsa_accum_offset 256
  .amdhsa_group_segment_fixed_size 0
  .amdhsa_kernarg_size 80
  .amdhsa_user_sgpr_count 2
  .amdhsa_user_sgpr_kernarg_segment_ptr 1
  .amdhsa_system_sgpr_workgroup_id_x 1
  .amdhsa_float_denorm_mode_32 3
.end_amdhsa_kernel
"""
    return text, desc, MAIN_LDS
```

```python
from asmgen import *
from layout import *

assert all((fb * 147) >> 10 == fb // 7 for fb in range(112))


def srd(P, d, base, nbytes):
    P.e(f"s_mov_b32 s{d}, s{base}\ns_and_b32 s{d+1}, s{base+1}, 0xffff\ns_mov_b32 s{d+2}, {nbytes}\ns_mov_b32 s{d+3}, 0x20000")


def gen_prep(st="sc1", main_label="main_kernel", code_kb=32):
    P = Prog()
    e = P.e
    e("s_cmp_ge_u32 s2, 256\ns_cbranch_scc1 Lp_done")
    e("s_load_dwordx4 s[4:7], s[0:1], 0")
    e("s_load_dwordx2 s[8:9], s[0:1], 16")
    e("s_load_dwordx4 s[12:15], s[0:1], 32")
    e("s_load_dwordx2 s[10:11], s[0:1], 48")
    e("s_load_dwordx2 s[16:17], s[0:1], 72")
    e("v_lshrrev_b32 v1, 6, v0\nv_and_b32 v2, 63, v0")
    e("v_readfirstlane_b32 s18, v1")
    e("v_lshlrev_b32 v3, 4, v2")
    e("v_lshrrev_b32 v4, 3, v2\nv_and_b32 v5, 7, v2\nv_lshlrev_b32 v5, 4, v5")
    e("v_and_b32 v6, 15, v2\nv_lshrrev_b32 v7, 4, v2")
    e("v_mov_b32 v8, 0x3f803f80\nv_mov_b32 v9, 0x3f803f80\nv_mov_b32 v10, 0x3f803f80\nv_mov_b32 v11, 0x3f803f80")
    e("s_lshl_b32 s19, s18, 8\ns_add_u32 s19, s19, s2")
    e("s_mul_i32 s20, s18, 16896")
    e("s_waitcnt lgkmcnt(0)")
    srd(P, 24, 4, 2097152)
    srd(P, 28, 6, 1572864)
    srd(P, 32, 8, 524288)
    srd(P, 36, 12, 1835008)
    srd(P, 40, 14, 1835008)
    srd(P, 44, 10, 1835008)
    srd(P, 48, 16, WS_BYTES)
    e("s_cmp_lt_u32 s19, 224\ns_cbranch_scc1 Lp_G")
    e("s_cmp_lt_u32 s19, 336\ns_cbranch_scc1 Lp_D")
    e("s_cmp_lt_u32 s19, 432\ns_cbranch_scc1 Lp_Q")
    e("s_cmp_lt_u32 s19, 464\ns_cbranch_scc1 Lp_O")
    e("s_cmp_lt_u32 s19, 592\ns_cbranch_scc1 Lp_X")
    e("s_cmp_lt_u32 s19, 768\ns_cbranch_scc1 Lp_done")
    head = P.L
    bodies = []

    def new(label):
        nonlocal P, e
        P = Prog()
        e = P.e
        if label:
            e(label + ":")
        bodies.append(P)

    def dma_rows(srdreg, n, stride, lds_off):
        for i in range(n):
            e(f"s_add_u32 m0, s20, {lds_off + i * 1024}")
            e(f"buffer_load_dwordx4 v12, s[{srdreg}:{srdreg+3}], s21 offen lds", tag="ld")
            e(f"s_add_u32 s21, s21, {8 * stride}")

    def row_voff(stride):
        e(f"v_mul_u32_u24 v12, {stride}, v4\nv_add_u32 v12, v12, v5")

    def tr_base32(half_bytes):
        e("v_lshrrev_b32 v13, 1, v7\nv_lshlrev_b32 v13, 2, v13\nv_lshrrev_b32 v14, 2, v6\nv_add_u32 v13, v13, v14\nv_lshlrev_b32 v13, 7, v13")
        e(f"v_and_b32 v14, 1, v7\nv_mul_u32_u24 v14, {half_bytes}, v14\nv_add_u32 v13, v13, v14")
        e("v_and_b32 v14, 3, v6\nv_lshlrev_b32 v14, 3, v14\nv_add3_u32 v13, v13, v14, s20")

    def tr(f, off, second):
        e(f"ds_read_b64_tr_b16 v[{64+4*f}:{65+4*f}], v13 offset:{off}")
        e(f"ds_read_b64_tr_b16 v[{66+4*f}:{67+4*f}], v13 offset:{off + second}")

    def store(f, soff):
        e(f"buffer_store_dwordx4 v[{64+4*f}:{67+4*f}], v3, s[48:51], {soff} offen {st}")

    new(None)
    e("v_mov_b32 v16, 0\nv_mov_b32 v17, 0\nv_mov_b32 v18, 0\nv_mov_b32 v19, 0")
    e("s_cmp_ge_u32 s2, 64\ns_cbranch_scc1 Lp_pf")
    e(f"s_lshl_b32 s21, s2, 10\ns_add_u32 s21, s21, {FLAGS}")
    e(f"buffer_store_dwordx4 v[16:19], v3, s[48:51], s21 offen {st}")
    e("Lp_pf:")
    e("s_getpc_b64 s[22:23]\nLp_pc:")
    e(f"s_add_u32 s22, s22, {main_label}-Lp_pc\ns_addc_u32 s23, s23, 0")
    for k in range(code_kb // 32):
        e(f"s_lshr_b32 s21, s2, 3\ns_lshl_b32 s21, s21, 10\ns_add_u32 s21, s21, {k * 32768}\nv_add_u32 v12, s21, v3")
        e(f"global_load_dwordx4 v[{20+4*k}:{23+4*k}], v12, s[22:23]")
    e("s_waitcnt vmcnt(0)\ns_endpgm")

    new("Lp_G")
    e("s_lshr_b32 s52, s19, 3\ns_and_b32 s53, s19, 7")
    row_voff(3584)
    e(f"s_mul_i32 s21, s53, {64*3584}\ns_lshl_b32 s54, s52, 7\ns_add_u32 s21, s21, s54\ns_mov_b32 s55, s21")
    dma_rows(36, 8, 3584, 0)
    e("s_mov_b32 s21, s55")
    dma_rows(40, 8, 3584, 8192)
    tr_base32(8192)
    e("v_lshrrev_b32 v15, 5, v2\nv_lshlrev_b32 v15, 4, v15")
    P.wait("ld")
    for j4 in range(4):
        for c in range(4):
            tr(4 * j4 + c, c * 2048 + j4 * 32, 1024)
    for j4 in range(4):
        e(f"s_lshl_b32 s56, s52, 2\ns_add_u32 s56, s56, {j4}")
        e("s_mul_i32 s57, s56, 147\ns_lshr_b32 s57, s57, 10")
        e("s_mul_i32 s58, s57, 7\ns_sub_u32 s58, s56, s58")
        e("s_lshl_b32 s59, s53, 3\ns_add_u32 s59, s59, s58")
        e("s_lshl_b32 s60, s58, 5\ns_lshl_b32 s61, s53, 2\ns_add_u32 s60, s60, s61")
        e("s_cmp_lt_u32 s58, 2\ns_cselect_b32 s59, s59, s60\ns_cselect_b32 s60, 2, 1\ns_lshl_b32 s60, s60, 10")
        e(f"s_mul_i32 s61, s57, 224\ns_add_u32 s59, s59, s61\ns_lshl_b32 s59, s59, 10\ns_add_u32 s59, s59, {WG}")
        for c in range(4):
            f = 4 * j4 + c
            store(f, "s59")
            e(f"v_mfma_f32_32x32x16_bf16 v[{128+16*j4}:{143+16*j4}], v[{64+4*f}:{67+4*f}], v[8:11], " + ("0" if c == 0 else f"v[{128+16*j4}:{143+16*j4}]"))
            if c < 3:
                e("s_add_u32 s59, s59, s60")
        e(f"s_mul_i32 s{64+j4}, s57, 7168\ns_mul_i32 s61, s53, 896\ns_add_u32 s{64+j4}, s{64+j4}, s61")
        e(f"s_lshl_b32 s61, s58, 7\ns_add_u32 s{64+j4}, s{64+j4}, s61\ns_add_u32 s{64+j4}, s{64+j4}, {CSG}")
    e("s_mov_b32 exec_lo, 1\ns_mov_b32 exec_hi, 1")
    for j4 in range(4):
        for q in range(4):
            r = 128 + 16 * j4 + 4 * q
            e(f"buffer_store_dwordx4 v[{r}:{r+3}], v15, s[48:51], s{64+j4} offen offset:{q*32} {st}")
    e("s_waitcnt vmcnt(0)\ns_endpgm")

    new("Lp_D")
    e("s_sub_u32 s19, s19, 224\ns_and_b32 s52, s19, 7\ns_lshr_b32 s53, s19, 3")
    row_voff(1024)
    e("s_lshl_b32 s21, s53, 17\ns_lshl_b32 s54, s52, 7\ns_add_u32 s21, s21, s54")
    dma_rows(44, 16, 1024, 0)
    tr_base32(32)
    P.wait("ld")
    for lf in range(8):
        for nb in range(2):
            tr(2 * lf + nb, lf * 2048 + nb * 64, 1024)
    e(f"s_mul_i32 s55, s52, {224*1024}\ns_add_u32 s55, s55, {WD}")
    for lf in range(8):
        e(f"s_lshl_b32 s56, s53, 3\ns_add_u32 s56, s56, {lf}")
        e("s_mul_i32 s57, s56, 147\ns_lshr_b32 s57, s57, 10")
        e("s_mul_i32 s58, s57, 7\ns_sub_u32 s58, s56, s58")
        e("s_lshl_b32 s58, s58, 3\ns_and_b32 s59, s57, 7\ns_add_u32 s58, s58, s59")
        e("s_lshr_b32 s59, s58, 2\ns_lshl_b32 s59, s59, 4")
        e("s_and_b32 s58, s58, 3\ns_lshl_b32 s58, s58, 1\ns_add_u32 s59, s59, s58")
        e("s_and_b32 s57, s57, 8\ns_add_u32 s59, s59, s57\ns_lshl_b32 s59, s59, 10\ns_add_u32 s59, s59, s55")
        store(2 * lf, "s59")
        e(f"buffer_store_dwordx4 v[{64+4*(2*lf+1)}:{67+4*(2*lf+1)}], v3, s[48:51], s59 offen offset:1024 {st}")
    e("s_waitcnt vmcnt(0)\ns_endpgm")

    new("Lp_Q")
    e("s_sub_u32 s19, s19, 336\ns_and_b32 s53, s19, 3\ns_lshr_b32 s52, s19, 2\ns_and_b32 s52, s52, 7\ns_lshr_b32 s54, s19, 5")
    row_voff(3072)
    e(f"s_mul_i32 s21, s53, {128*3072}\ns_lshl_b32 s55, s52, 7\ns_add_u32 s21, s21, s55\ns_lshl_b32 s55, s54, 10\ns_add_u32 s21, s21, s55")
    dma_rows(28, 16, 3072, 0)
    e("v_lshrrev_b32 v13, 1, v7\nv_lshlrev_b32 v13, 4, v13\nv_and_b32 v14, 1, v7\nv_lshlrev_b32 v14, 2, v14\nv_add_u32 v13, v13, v14")
    e("v_lshrrev_b32 v14, 2, v6\nv_add_u32 v13, v13, v14\nv_lshlrev_b32 v13, 7, v13")
    e("v_and_b32 v14, 3, v6\nv_lshlrev_b32 v14, 3, v14\nv_add3_u32 v13, v13, v14, s20")
    e("v_lshlrev_b32 v15, 4, v7")
    P.wait("ld")
    for cb in range(4):
        for c in range(4):
            tr(4 * cb + c, c * 4096 + cb * 32, 1024)
    for cb in range(4):
        hh = cb & 1
        e(f"s_add_u32 s56, s54, {1 + 2*hh}\ns_cmp_eq_u32 s54, 0\ns_cselect_b32 s56, {hh}, s56")
        e(f"s_lshl_b32 s57, s52, 1\ns_add_u32 s57, s57, {cb >> 1}")
        e("s_mul_i32 s58, s57, 6\ns_add_u32 s58, s58, s56\ns_lshl_b32 s58, s58, 2\ns_add_u32 s58, s58, s53\ns_lshl_b32 s58, s58, 12")
        if WQ:
            e(f"s_add_u32 s58, s58, {WQ}")
        for c in range(4):
            f = 4 * cb + c
            e(f"buffer_store_dwordx4 v[{64+4*f}:{67+4*f}], v3, s[48:51], s58 offen offset:{c*1024} {st}")
            e(f"v_mfma_f32_16x16x32_bf16 v[{128+4*cb}:{131+4*cb}], v[{64+4*f}:{67+4*f}], v[8:11], " + ("0" if c == 0 else f"v[{128+4*cb}:{131+4*cb}]"))
        e(f"s_mul_i32 s{64+cb}, s57, 1536\ns_mul_i32 s59, s53, 384\ns_add_u32 s{64+cb}, s{64+cb}, s59")
        e(f"s_lshl_b32 s59, s56, 6\ns_add_u32 s{64+cb}, s{64+cb}, s59\ns_add_u32 s{64+cb}, s{64+cb}, {CSQ}")
    e("s_mov_b32 exec_lo, 0x00010001\ns_mov_b32 exec_hi, 0x00010001")
    for cb in range(4):
        e(f"buffer_store_dwordx4 v[{128+4*cb}:{131+4*cb}], v15, s[48:51], s{64+cb} offen {st}")
    e("s_waitcnt vmcnt(0)\ns_endpgm")

    new("Lp_O")
    e("s_sub_u32 s19, s19, 432\ns_and_b32 s53, s19, 3\ns_lshr_b32 s52, s19, 2")
    row_voff(1024)
    e("s_lshl_b32 s21, s53, 17\ns_lshl_b32 s54, s52, 7\ns_add_u32 s21, s21, s54")
    dma_rows(32, 16, 1024, 0)
    tr_base32(32)
    e("s_lshl_b32 s55, s52, 6\ns_and_b32 s56, s53, 1\ns_lshl_b32 s56, s56, 5\ns_add_u32 s55, s55, s56")
    e(f"s_lshr_b32 s56, s53, 1\ns_lshl_b32 s56, s56, 3\ns_add_u32 s55, s55, s56\ns_lshl_b32 s55, s55, 10\ns_add_u32 s55, s55, {WO}")
    P.wait("ld")
    for c in range(8):
        for nb in range(2):
            tr(2 * c + nb, (32 * (c >> 1) + 8 * (c & 1)) * 128 + nb * 64, 2048)
    for c in range(8):
        e(f"s_add_u32 s56, s55, {((c >> 2) * 16 + (c & 3) * 2) * 1024}")
        for nb in range(2):
            f = 2 * c + nb
            e(f"buffer_store_dwordx4 v[{64+4*f}:{67+4*f}], v3, s[48:51], s56 offen offset:{nb*1024} {st}")
    e("s_waitcnt vmcnt(0)\ns_endpgm")

    new("Lp_X")
    e("s_sub_u32 s52, s19, 464")
    e("s_and_b32 s53, s52, 63\ns_lshl_b32 s21, s53, 15\ns_lshr_b32 s53, s52, 6\ns_lshl_b32 s53, s53, 10\ns_add_u32 s21, s21, s53")
    for i in range(16):
        e(f"s_add_u32 m0, s20, {i * 1040}")
        e("buffer_load_dwordx4 v3, s[24:27], s21 offen lds", tag="ld")
        e("s_add_u32 s21, s21, 2048")
    e("v_mul_u32_u24 v13, 1040, v6\nv_lshrrev_b32 v14, 1, v7\nv_lshlrev_b32 v14, 5, v14\nv_add_u32 v13, v13, v14")
    e("v_and_b32 v14, 1, v7\nv_lshlrev_b32 v14, 3, v14\nv_add3_u32 v13, v13, v14, s20")
    e(f"s_lshl_b32 s55, s52, 14\ns_add_u32 s55, s55, {ACT + XA}")
    e("v_lshrrev_b32 v15, 1, v7\nv_lshlrev_b32 v15, 9, v15\nv_and_b32 v14, 1, v7\nv_lshlrev_b32 v14, 3, v14\nv_add_u32 v15, v15, v14")
    e("v_lshlrev_b32 v14, 4, v6\nv_add_u32 v15, v15, v14")
    e(f"s_lshr_b32 s56, s52, 1\ns_lshl_b32 s56, s56, 12\ns_and_b32 s57, s52, 1\ns_lshl_b32 s57, s57, 8\ns_add_u32 s56, s56, s57\ns_add_u32 s56, s56, {ACT + SA}")
    e("v_mov_b32 v16, 0\nv_mov_b32 v17, 0\nv_mov_b32 v18, 0\nv_mov_b32 v19, 0\nv_mov_b32 v20, 0\nv_mov_b32 v21, 0")
    P.wait("ld")
    for q in range(16):
        e(f"ds_read2_b64 v[{64+4*q}:{67+4*q}], v13 offset0:{8*q} offset1:{8*q+2}")
    for q in range(16):
        if q % 4 == 0 and q:
            e("s_add_u32 s55, s55, 4096")
        e(f"buffer_store_dwordx4 v[{64+4*q}:{67+4*q}], v3, s[48:51], s55 offen offset:{(q & 3)*1024} {st}")
        for k in range(4):
            r = 64 + 4 * q + k
            a = 16 + 2 * (k & 1)
            e(f"v_dot2_f32_bf16 v{a}, v{r}, v8, v{a}\nv_dot2_f32_bf16 v{a+1}, v{r}, v{r}, v{a+1}")
    e("s_nop 3\nv_add_f32 v16, v16, v18\nv_add_f32 v17, v17, v19")
    e(f"buffer_store_dwordx2 v[16:17], v15, s[48:51], s56 offen {st}")
    for k in range(1, 4):
        e(f"buffer_store_dwordx2 v[20:21], v15, s[48:51], s56 offen offset:{k*1024} {st}")
    e("s_waitcnt vmcnt(0)")
    e("Lp_done:\ns_endpgm")

    finalize([head + b.L for b in bodies])
    text = render(head) + "".join(render(b.L) for b in bodies)
    return text


PREP_LDS = 4 * 16896
PREP_DESC = """.amdhsa_kernel prep_kernel
  .amdhsa_next_free_vgpr 192
  .amdhsa_next_free_sgpr 96
  .amdhsa_accum_offset 192
  .amdhsa_group_segment_fixed_size 0
  .amdhsa_kernarg_size 80
  .amdhsa_user_sgpr_count 2
  .amdhsa_user_sgpr_kernarg_segment_ptr 1
  .amdhsa_system_sgpr_workgroup_id_x 1
  .amdhsa_float_denorm_mode_32 3
.end_amdhsa_kernel
"""
```

```python
import sys, os
sys.path.insert(0, os.path.dirname(os.path.abspath(__file__)))
from prep import *
NAME = "interleave_layers__sliding_local_dilated__swiglu_ffn__prompt"
HEAD = open(f"cdna_kernels/{NAME}.s.ref").read().split("; Override launch")[0]

def assemble(main_text, main_desc, main_lds, prep_st="sc1", code_kb=32, extra_launch=""):
    s = HEAD
    s += f"; @launch kernel=prep_kernel grid=(256,1,1) block=(256,1,1) lds={PREP_LDS}\n"
    s += extra_launch
    s += f"; @launch kernel=main_kernel grid=(256,1,1) block=(256,1,1) lds={main_lds}\n"
    s += '.amdgcn_target "amdgcn-amd-amdhsa--gfx950"\n.text\n'
    s += ".globl prep_kernel\n.p2align 8\n.type prep_kernel,@function\nprep_kernel:\n"
    s += gen_prep(prep_st, "main_kernel", code_kb)
    s += ".globl main_kernel\n.p2align 8\n.type main_kernel,@function\nmain_kernel:\n"
    s += main_text
    s += '.section .rodata,"a"\n.p2align 6\n' + PREP_DESC + ".p2align 6\n" + main_desc
    return s

if __name__ == "__main__":
    import importlib
    out = sys.argv[1] if len(sys.argv) > 1 else f"cdna_kernels/{NAME}.s"
    opts = dict(a.split("=") for a in sys.argv[2:])
    try:
        import mainv
        text, desc, lds = mainv.gen_main(opts)
    except ImportError:
        text = "s_endpgm\n.fill 8192, 4, 0xbf800000\n"
        desc = PREP_DESC.replace("prep_kernel", "main_kernel"); lds = 0
    open(out, "w").write(assemble(text, desc, lds, opts.get("prep_st", "sc1"), int(opts.get("code_kb", 32))))
    print("wrote", out, os.path.getsize(out))
```

```python
import sys, os
sys.path.insert(0, os.path.dirname(os.path.abspath(__file__)))
from prep import *
NAME = "interleave_layers__sliding_local_dilated__swiglu_ffn__prompt"
HEAD = open(f"cdna_kernels/{NAME}.s.ref").read().split("; Override launch")[0]

def assemble(main_text, main_desc, main_lds, prep_st="sc1", code_kb=32, nnop=0):
    s = HEAD
    extra_launch = "; @launch kernel=nop_kernel grid=(256,1,1) block=(256,1,1) lds=0\n" * nnop
    if nnop:
        main_text += ".globl nop_kernel\n.p2align 8\n.type nop_kernel,@function\nnop_kernel:\ns_endpgm\n"
        main_desc += ".p2align 6\n" + PREP_DESC.replace("prep_kernel", "nop_kernel")
    s += f"; @launch kernel=prep_kernel grid=(256,1,1) block=(256,1,1) lds={PREP_LDS}\n"
    s += extra_launch
    s += f"; @launch kernel=main_kernel grid=(256,1,1) block=(256,1,1) lds={main_lds}\n"
    s += '.amdgcn_target "amdgcn-amd-amdhsa--gfx950"\n.text\n'
    s += ".globl prep_kernel\n.p2align 8\n.type prep_kernel,@function\nprep_kernel:\n"
    s += gen_prep(prep_st, "main_kernel", code_kb)
    s += ".globl main_kernel\n.p2align 8\n.type main_kernel,@function\nmain_kernel:\n"
    s += main_text
    s += '.section .rodata,"a"\n.p2align 6\n' + PREP_DESC + ".p2align 6\n" + main_desc
    return s

if __name__ == "__main__":
    import importlib
    out = sys.argv[1] if len(sys.argv) > 1 else f"cdna_kernels/{NAME}.s"
    opts = dict(a.split("=") for a in sys.argv[2:])
    try:
        import mainv
        text, desc, lds = mainv.gen_main(opts)
    except ImportError:
        text = "s_endpgm\n.fill 8192, 4, 0xbf800000\n"
        desc = PREP_DESC.replace("prep_kernel", "main_kernel"); lds = 0
    open(out, "w").write(assemble(text, desc, lds, opts.get("prep_st", "sc1"), int(opts.get("code_kb", 32)), int(opts.get("nnop", 0))))
    print("wrote", out, os.path.getsize(out))
```
